```python
import torch

def _softmax(x, axis=-1):
    return torch.softmax(x, dim=axis)

def _gelu(x):
    return torch.nn.functional.gelu(x, approximate='tanh')

def _silu(x):
    return torch.nn.functional.silu(x)

def _sigmoid(x):
    return torch.sigmoid(x)

def _layernorm(x, axis=-1, eps=1e-05):
    m = x.mean(dim=axis, keepdim=True)
    v = x.var(dim=axis, keepdim=True, unbiased=False)
    return (x - m) / torch.sqrt(v + eps)

def _scatter_add(tgt, idx, src, axis=0):
    return tgt.clone().index_add_(axis, idx, src)

def _segment_sum(src, seg, n):
    out = torch.zeros((n,) + src.shape[1:], dtype=src.dtype)
    return out.index_add_(0, seg, src)

def _pad(x, pw):
    flat = tuple((v for pair in reversed(pw) for v in pair))
    return torch.nn.functional.pad(x, flat)
kernel_name = 'adaLN_cond__gqa_block_cached__glu_gated_geglu__prompt'

def setup_inputs():

    _w = lambda a: (lambda t: t.to(torch.bfloat16) if t.is_floating_point() else t)(torch.as_tensor(a))

    def _A_setup():
        B, Sq, D = (1, 2048, 512)
        Hq, Hkv, Sk, Dh = (32, 32, 2048, 128)
        assert Hq % Hkv == 0, (Hq, Hkv)
        return {'x': _w((lambda *s: torch.randn(*s, dtype=torch.bfloat16) * 0.05)(B, Sq, D)), 'k_cache': _w((lambda *s: torch.randn(*s, dtype=torch.bfloat16) * 0.8)(B, Hkv, Sk, Dh)), 'v_cache': _w((lambda *s: torch.randn(*s, dtype=torch.bfloat16) * 3.2)(B, Hkv, Sk, Dh)), 'wq': _w((lambda *s: torch.randn(*s, dtype=torch.bfloat16) * 0.8)(D, Hq * Dh) * D ** (-0.5)), 'wo': _w((lambda *s: torch.randn(*s, dtype=torch.bfloat16) * 3.2)(Hq * Dh, D) * (Hq * Dh) ** (-0.5))}
    _A_in = _A_setup()

    def _B_setup():
        B, S, Dm, Df = (1, 2048, 512, 1376)
        return {'x': _w((lambda *s: torch.randn(*s, dtype=torch.bfloat16) * 0.05)(B, S, Dm)), 'w_gate': _w((lambda *s: torch.randn(*s, dtype=torch.bfloat16) * 3.2)(Dm, Df) * Dm ** (-0.5)), 'w_up': _w((lambda *s: torch.randn(*s, dtype=torch.bfloat16) * 3.2)(Dm, Df) * Dm ** (-0.5)), 'w_down': _w((lambda *s: torch.randn(*s, dtype=torch.bfloat16) * 3.2)(Df, Dm) * Df ** (-0.5))}
    _B_in = _B_setup()
    return {'A_x': _A_in['x'], 'A_k_cache': _A_in['k_cache'], 'A_v_cache': _A_in['v_cache'], 'A_wq': _A_in['wq'], 'A_wo': _A_in['wo'], 'B_x': _B_in['x'], 'B_w_gate': _B_in['w_gate'], 'B_w_up': _B_in['w_up'], 'B_w_down': _B_in['w_down'], 'c': _w((lambda *s: torch.randn(*s, dtype=torch.bfloat16) * 0.4)(1, 512) * 8.0), 'w_mod': _w((lambda *s: torch.randn(*s, dtype=torch.bfloat16) * 0.4)(512, 6 * 512) * 512 ** (-0.5) * 8.0)}

def reference(A_x, A_k_cache, A_v_cache, A_wq, A_wo, B_x, B_w_gate, B_w_up, B_w_down, c, w_mod):

    def _A_ref(x, k_cache, v_cache, wq, wo):
        B, Sq, D = x.shape
        Hq, Dh = (32, 128)
        Hkv = k_cache.shape[1]
        rep = Hq // Hkv
        q = (lambda x, *d: x.permute(*d))((x @ wq).reshape(B, Sq, Hq, Dh), 0, 2, 1, 3)
        k = (lambda x, n, axis: torch.repeat_interleave(x, n, dim=axis))(k_cache, rep, axis=1)
        v = (lambda x, n, axis: torch.repeat_interleave(x, n, dim=axis))(v_cache, rep, axis=1)
        scores = torch.einsum('bhqd,bhkd->bhqk', q, k) * Dh ** (-0.5)
        p = _softmax(scores, axis=-1)
        o = torch.einsum('bhqk,bhkd->bhqd', p, v)
        return (lambda x, *d: x.permute(*d))(o, 0, 2, 1, 3).reshape(B, Sq, Hq * Dh) @ wo

    def _B_ref(x, w_gate, w_up, w_down):
        g = torch.einsum('bsd,df->bsf', x, w_gate)
        u = torch.einsum('bsd,df->bsf', x, w_up)
        h = _gelu(g) * u
        return torch.einsum('bsf,fd->bsd', h, w_down)
    x = A_x
    mod = (_silu(c) @ w_mod).reshape(c.shape[0], 6, 1, -1)
    sa, ca, ga, sb, cb, gb = (mod[:, 0].clone(), mod[:, 1].clone(), mod[:, 2].clone(), mod[:, 3].clone(), mod[:, 4].clone(), mod[:, 5].clone())
    h = _layernorm(x, axis=-1) * (1 + ca) + sa
    x = x + ga * _A_ref(h, A_k_cache, A_v_cache, A_wq, A_wo)
    h = _layernorm(x, axis=-1) * (1 + cb) + sb
    x = x + gb * _B_ref(h, B_w_gate, B_w_up, B_w_down)
    return x
```

```python
class Kern:
    def __init__(self, name, grid, block, lds=0):
        self.name = name
        self.grid = grid
        self.block = block
        self.lds = lds
        self.lines = []
        self.nvgpr = 256
        self.nagpr = 0
        self.nsgpr = 102
        self._lab = 0

    def __call__(self, s):
        for ln in s.strip("\n").split("\n"):
            ln = ln.strip()
            if ln:
                self.lines.append("    " + ln)

    def label(self, l):
        self.lines.append(f"{l}:")

    def newlabel(self, p="L"):
        self._lab += 1
        return f"{self.name}_{p}{self._lab}"

    def launch_line(self):
        g, b = self.grid, self.block
        return f"; @launch kernel={self.name} grid=({g},1,1) block=({b},1,1) lds={self.lds}"

    def text(self):
        out = [f".globl {self.name}", ".p2align 8", f".type {self.name},@function", f"{self.name}:"]
        out += self.lines
        out.append("    s_endpgm")
        return "\n".join(out)

    def desc(self):
        acc = (self.nvgpr + 3) // 4 * 4
        nfv = acc + self.nagpr if self.nagpr else self.nvgpr
        return "\n".join([
            ".p2align 6",
            f".amdhsa_kernel {self.name}",
            f"  .amdhsa_next_free_vgpr {nfv}",
            f"  .amdhsa_next_free_sgpr {self.nsgpr}",
            f"  .amdhsa_accum_offset {acc}",
            "  .amdhsa_group_segment_fixed_size 0",
            "  .amdhsa_kernarg_size 112",
            "  .amdhsa_user_sgpr_count 2",
            "  .amdhsa_user_sgpr_kernarg_segment_ptr 1",
            "  .amdhsa_system_sgpr_workgroup_id_x 1",
            ".end_amdhsa_kernel"])


ARG = dict(x=0, k=8, v=16, wq=24, wo=32, bx=40, wg=48, wu=56, wd=64, c=72, wmod=80, out=88, dbg=96, ws=104)
SIZE = dict(x=2048 * 512 * 2, k=32 * 2048 * 128 * 2, v=32 * 2048 * 128 * 2, wq=512 * 4096 * 2, wo=4096 * 512 * 2,
            bx=2048 * 512 * 2, wg=512 * 1376 * 2, wu=512 * 1376 * 2, wd=1376 * 512 * 2, c=1024, wmod=512 * 3072 * 2,
            out=2048 * 512 * 2, dbg=256, ws=268435456)

WS = {}
_off = 0
def _ws(name, nbytes):
    global _off
    WS[name] = (_off, nbytes)
    _off += (nbytes + 4095) // 4096 * 4096
_ws("mod", 3072 * 4)
_ws("h", 2048 * 512 * 2)
_ws("q", 2048 * 4096 * 2)
_ws("o", 2048 * 4096 * 2)
_ws("part", 8 * 2048 * 512 * 4)
_ws("x1", 2048 * 512 * 2)
_ws("h2", 2048 * 512 * 2)
_ws("hh", 2048 * 1376 * 2)


def load_ptrs(k, names, sbase):
    regs = {}
    for i, n in enumerate(names):
        r = sbase + 2 * i
        k(f"s_load_dwordx2 s[{r}:{r+1}], s[0:1], {ARG[n]}")
        regs[n] = r
    k("s_waitcnt lgkmcnt(0)")
    return regs


def make_srd(k, d, ptr, nbytes, off=0):
    if off:
        k(f"s_add_u32 s{d}, s{ptr}, {off}")
        k(f"s_addc_u32 s{d+1}, s{ptr+1}, 0")
        k(f"s_and_b32 s{d+1}, s{d+1}, 0xffff")
    else:
        k(f"s_mov_b32 s{d}, s{ptr}")
        k(f"s_and_b32 s{d+1}, s{ptr+1}, 0xffff")
    k(f"s_mov_b32 s{d+2}, {nbytes}")
    k(f"s_mov_b32 s{d+3}, 0x00020000")


def ws_srd(k, d, wsptr, name):
    off, nb = WS[name]
    make_srd(k, d, wsptr, nb, off)


def assemble(kernels, header):
    out = []
    out.append(header)
    for kk in kernels:
        out.append(kk.launch_line())
    out.append('.amdgcn_target "amdgcn-amd-amdhsa--gfx950"')
    out.append(".text")
    seen = set()
    for kk in kernels:
        if kk.name in seen:
            continue
        seen.add(kk.name)
        out.append(kk.text())
    out.append('.section .rodata,"a"')
    seen = set()
    for kk in kernels:
        if kk.name in seen:
            continue
        seen.add(kk.name)
        out.append(kk.desc())
    return "\n".join(out) + "\n"
```

```python
from asmlib import *
import struct


def f2u(x):
    return struct.unpack("<I", struct.pack("<f", x))[0]


CSC = 0.08838834764831845 * 1.4426950408889634
TRAW = 16.0 / CSC

V_KA = list(range(16, 24))
V_VA = list(range(24, 28))
V_DK = list(range(28, 32))
V_DV = list(range(32, 36))
V_MC = [36, 37]
V_L = [38, 39]
V_MREF = [40, 41]
V_THR = [42, 43]
V_TMAX = [44, 45]
V_T = list(range(46, 60))
P_BASE = 96
S_BASE = [128, 192]
A_O = 0
A_Q = 128
A_KF = 192
A_VF = 224
KRING = 0
VRING = 65536
S_SRD_K, S_SRD_V, S_SRD_Q, S_SRD_O = 16, 20, 24, 28
S_W1K = 45
S_KSO, S_VSO = 46, 47
S_KM0, S_VM0 = 48, 49
S_CNT = 50
S_C = 51
S_DKA, S_DVA = 52, 53


def Sreg(buf, kb, qb):
    return S_BASE[buf] + (kb * 2 + qb) * 16


def Preg(ks, qb):
    return P_BASE + (ks * 2 + qb) * 4


def Oreg(db, qb):
    return A_O + (db * 2 + qb) * 16


def Qreg(ds, qb):
    return A_Q + (ds * 2 + qb) * 4


class Item:
    def __init__(self, text, w=1.0, lds_def=None, kind="v"):
        self.text = text
        self.w = w
        self.lds_def = lds_def
        self.kind = kind


def spread(gaps, items, start, end, nslots=64):
    tot = sum(i.w for i in items)
    n = end - start
    acc = 0.0
    for it in items:
        g = start + min(n - 1, int((acc + 0.5 * it.w) / tot * n))
        gaps[g % nslots].append((g, it))
        acc += it.w


def k_read(kb, ds):
    fi = (kb * 8 + ds) % 8
    r = A_KF + fi * 4
    return Item(f"ds_read_b128 a[{r}:{r+3}], v{V_KA[ds]} offset:{kb*8192}", 1, ("K", kb, ds), "lds")


def v_reads(db, ks):
    fi = (ks * 4 + db) % 8
    r = A_VF + fi * 4
    off = 16 * ks * 256
    return [Item(f"ds_read_b64_tr_b16 a[{r}:{r+1}], v{V_VA[db]} offset:{off}", 1, ("V", db, ks, 0), "lds"),
            Item(f"ds_read_b64_tr_b16 a[{r+2}:{r+3}], v{V_VA[db]} offset:{off+8*256}", 1, ("V", db, ks, 1), "lds")]


def qk_mfma(buf, kb, ds, qb):
    s = Sreg(buf, kb, qb)
    kf = A_KF + ((kb * 8 + ds) % 8) * 4
    q = Qreg(ds, qb)
    c = "0" if ds == 0 else f"v[{s}:{s+15}]"
    return (f"v_mfma_f32_32x32x16_bf16 v[{s}:{s+15}], a[{kf}:{kf+3}], a[{q}:{q+3}], {c}", [("K", kb, ds)])


def pv_mfma(db, ks, qb):
    o = Oreg(db, qb)
    vf = A_VF + ((ks * 4 + db) % 8) * 4
    p = Preg(ks, qb)
    return (f"v_mfma_f32_32x32x16_bf16 a[{o}:{o+15}], a[{vf}:{vf+3}], v[{p}:{p+3}], a[{o}:{o+15}]",
            [("V", db, ks, 0), ("V", db, ks, 1)])


def exp_group(buf, ks, qb):
    kb = ks >> 1
    base = Sreg(buf, kb, qb) + 8 * (ks & 1)
    p = Preg(ks, qb)
    it = []
    def fma(r): return Item(f"v_fma_f32 v{r}, v{r}, s{S_C}, -v{V_MC[qb]}")
    def ex(r): return Item(f"v_exp_f32 v{r}, v{r}", 2.0)
    def add(r): return Item(f"v_add_f32 v{V_L[qb]}, v{V_L[qb]}, v{r}")
    def cvt(d, a, b): return Item(f"v_cvt_pk_bf16_f32 v{d}, v{a}, v{b}")
    prs = [(base + 2 * i, base + 2 * i + 1) for i in range(4)]
    it += [fma(prs[0][0]), fma(prs[0][1]), ex(prs[0][0]), ex(prs[0][1])]
    for i in range(1, 4):
        a, b = prs[i]
        pa, pb = prs[i - 1]
        it += [fma(a), fma(b), ex(a), cvt(p + i - 1, pa, pb), ex(b), add(pa), add(pb)]
    a, b = prs[3]
    it += [Item("s_nop 0", 0.5), cvt(p + 3, a, b), add(a), add(b)]
    return it


def max_items(buf, kb):
    it = []
    for qb in range(2):
        s = Sreg(buf, kb, qb)
        t = V_TMAX[qb]
        if kb == 0:
            it.append(Item(f"v_max3_f32 v{t}, v{s}, v{s+1}, v{s+2}"))
            rest = list(range(s + 3, s + 16))
        else:
            rest = list(range(s, s + 16))
        while len(rest) >= 2:
            a, b = rest[0], rest[1]
            rest = rest[2:]
            it.append(Item(f"v_max3_f32 v{t}, v{t}, v{a}, v{b}"))
        if rest:
            it.append(Item(f"v_max_f32 v{t}, v{t}, v{rest[0]}"))
    h = len(it) // 2
    out = []
    for a, b in zip(it[:h], it[h:]):
        out += [a, b]
    return out


def dma_items():
    it = []
    for i in range(4):
        it.append(Item(f"s_add_u32 m0, s{S_KM0}, {i*4096}", 0.5, kind="s"))
        it.append(Item("s_nop 0", 0.5, kind="s"))
        it.append(Item(f"buffer_load_dwordx4 v{V_DK[i]}, s[{S_SRD_K}:{S_SRD_K+3}], s{S_KSO} offen lds", 1, kind="m"))
    for i in range(4):
        it.append(Item(f"s_add_u32 m0, s{S_VM0}, {i*4096}", 0.5, kind="s"))
        it.append(Item("s_nop 0", 0.5, kind="s"))
        it.append(Item(f"buffer_load_dwordx4 v{V_DV[i]}, s[{S_SRD_V}:{S_SRD_V+3}], s{S_VSO} offen lds", 1, kind="m"))
    return it


def build_iter(cur, do_qk=True):
    nxt = cur ^ 1
    mf = []
    for kb in range(2):
        for ds in range(8):
            for qb in range(2):
                mf.append(qk_mfma(nxt, kb, ds, qb))
    for ks in range(4):
        for db in range(4):
            for qb in range(2):
                mf.append(pv_mfma(db, ks, qb))
    gaps = [[] for _ in range(64)]
    LEAD = 5
    for kb in range(2):
        for ds in range(8):
            g = 16 * kb + 2 * ds - LEAD
            gaps[g % 64].append((g, k_read(kb, ds)))
    for ks in range(4):
        for db in range(4):
            g = 32 + 8 * ks + 2 * db - LEAD
            rs = v_reads(db, ks)
            gaps[g % 64].append((g, rs[0]))
            gaps[(g + 1) % 64].append((g + 1, rs[1]))
    E = []
    for ks in range(4):
        for qb in range(2):
            E += exp_group(cur, ks, qb)
    spread(gaps, E, 0, 53)
    spread(gaps, max_items(nxt, 0), 20, 35)
    spread(gaps, max_items(nxt, 1), 37, 60)
    spread(gaps, dma_items(), 1, 17)
    ku = [Item(f"v_add_u32 v{r}, s{S_DKA}, v{r}") for r in V_KA]
    spread(gaps, ku, 40, 56)
    vu = [Item(f"v_add_u32 v{r}, s{S_DVA}, v{r}") for r in V_VA]
    spread(gaps, vu, 2, 10)
    return mf, gaps


def emit_iter(k, cur, state, first_in_pair):
    mf, gaps = build_iter(cur)
    for i in range(64):
        text, needs = mf[i]
        idx = -1
        for n in needs:
            if n in state:
                idx = max(idx, state.index(n))
        if idx >= 0:
            cnt = len(state) - 1 - idx
            k(f"s_waitcnt lgkmcnt({cnt})")
            del state[:idx + 1]
        k(text)
        items = sorted(gaps[i], key=lambda x: (0 if x[1].kind == "lds" else 1))
        for g, it in items:
            k(it.text)
            if it.lds_def is not None:
                state.append(it.lds_def)
                assert len(state) <= 15


def scalar_step(k):
    k(f"s_add_u32 s{S_KSO}, s{S_KSO}, 16384")
    k(f"s_add_u32 s{S_VSO}, s{S_VSO}, 16384")
    k(f"s_add_u32 s{S_KM0}, s{S_KM0}, 16384")
    k(f"s_and_b32 s{S_KM0}, s{S_KM0}, 0xffff")
    k(f"s_add_u32 s{S_VM0}, s{S_VM0}, 16384")
    k(f"s_and_b32 s{S_VM0}, s{S_VM0}, 0xffff")
    k(f"s_or_b32 s{S_VM0}, s{S_VM0}, 0x10000")


def attn_kernel():
    k = Kern("attn_kernel", 256, 256, 131072)
    k.nvgpr = 256
    k.nagpr = 256
    k.nsgpr = 80
    done = k.newlabel("done")
    k("s_cmp_ge_u32 s2, 256")
    k(f"s_cbranch_scc1 {done}")
    p = load_ptrs(k, ["k", "v", "ws"], 4)
    k("s_and_b32 s32, s2, 7")
    k("s_lshr_b32 s33, s2, 3")
    k("s_and_b32 s34, s33, 3")
    k("s_lshl_b32 s32, s32, 2")
    k("s_add_u32 s40, s32, s34")
    k("s_lshr_b32 s41, s33, 2")
    k("s_lshl_b32 s34, s40, 19")
    for nm, d in (("k", S_SRD_K), ("v", S_SRD_V)):
        k(f"s_add_u32 s{d}, s{p[nm]}, s34")
        k(f"s_addc_u32 s{d+1}, s{p[nm]+1}, 0")
        k(f"s_and_b32 s{d+1}, s{d+1}, 0xffff")
        k(f"s_mov_b32 s{d+2}, 524288")
        k(f"s_mov_b32 s{d+3}, 0x00020000")
    ws_srd(k, S_SRD_Q, p["ws"], "q")
    ws_srd(k, S_SRD_O, p["ws"], "o")
    k("v_lshrrev_b32 v1, 6, v0")
    k("s_nop 0")
    k("v_readfirstlane_b32 s44, v1")
    k("v_and_b32 v2, 63, v0")
    k(f"s_lshl_b32 s{S_W1K}, s44, 10")
    k(f"s_mov_b32 s{S_C}, {f2u(CSC):#x}")
    k("v_and_b32 v3, 31, v2")
    k("v_lshrrev_b32 v4, 5, v2")
    k("s_lshl_b32 s34, s41, 8")
    k("s_lshl_b32 s35, s44, 6")
    k("s_add_u32 s34, s34, s35")
    k("v_add_u32 v5, s34, v3")
    k("v_lshlrev_b32 v5, 13, v5")
    k("v_lshlrev_b32 v6, 4, v4")
    k("s_lshl_b32 s35, s40, 8")
    k("v_add3_u32 v5, v5, v6, s35")
    k("s_mov_b32 s36, 262144")
    for ds in range(8):
        for qb in range(2):
            q = Qreg(ds, qb)
            so = "0" if qb == 0 else "s36"
            k(f"buffer_load_dwordx4 a[{q}:{q+3}], v5, s[{S_SRD_Q}:{S_SRD_Q+3}], {so} offen offset:{ds*32}")
    for i in range(4):
        k(f"v_add_u32 v6, {i*256}, v0")
        k("v_lshrrev_b32 v7, 4, v6")
        k("v_and_b32 v8, 15, v6")
        k("v_and_b32 v9, 15, v7")
        k("v_xor_b32 v9, v8, v9")
        k("v_lshlrev_b32 v9, 4, v9")
        k(f"v_lshl_add_u32 v{V_DK[i]}, v7, 8, v9")
        k("v_and_b32 v9, 3, v7")
        k("v_lshlrev_b32 v9, 2, v9")
        k("v_xor_b32 v9, v8, v9")
        k("v_lshlrev_b32 v9, 4, v9")
        k(f"v_lshl_add_u32 v{V_DV[i]}, v7, 8, v9")
    k("v_and_b32 v6, 15, v3")
    k("v_lshlrev_b32 v7, 8, v3")
    for ds in range(8):
        k(f"v_add_u32 v8, {2*ds}, v4")
        k("v_xor_b32 v8, v8, v6")
        k(f"v_lshl_add_u32 v{V_KA[ds]}, v8, 4, v7")
    k("v_lshrrev_b32 v6, 4, v2")
    k("v_and_b32 v6, 1, v6")
    k("v_lshrrev_b32 v7, 2, v2")
    k("v_and_b32 v7, 3, v7")
    k("v_and_b32 v8, 3, v2")
    k("v_lshl_add_u32 v9, v4, 2, v7")
    k("v_lshlrev_b32 v9, 8, v9")
    k("v_and_b32 v10, 1, v8")
    k("v_lshl_add_u32 v9, v10, 3, v9")
    k("v_lshrrev_b32 v8, 1, v8")
    k("v_lshl_add_u32 v8, v6, 1, v8")
    k(f"v_add_u32 v9, {VRING + 3*16384}, v9")
    for db in range(4):
        k(f"v_xor_b32 v10, {db}, v7")
        k("v_lshl_add_u32 v10, v10, 2, v8")
        k(f"v_lshl_add_u32 v{V_VA[db]}, v10, 4, v9")
    def dma_tile(isK, t):
        base = (KRING if isK else VRING) + (t & 3) * 16384
        vs = V_DK if isK else V_DV
        srd = S_SRD_K if isK else S_SRD_V
        k(f"s_mov_b32 s34, {t*16384}")
        for i in range(4):
            k(f"s_add_u32 m0, s{S_W1K}, {base + i*4096}")
            k("s_nop 0")
            k(f"buffer_load_dwordx4 v{vs[i]}, s[{srd}:{srd+3}], s34 offen lds")
    dma_tile(True, 0)
    dma_tile(True, 1)
    dma_tile(False, 0)
    dma_tile(True, 2)
    dma_tile(False, 1)
    dma_tile(True, 3)
    dma_tile(False, 2)
    k(f"s_mov_b32 s{S_KSO}, {4*16384}")
    k(f"s_mov_b32 s{S_VSO}, {3*16384}")
    k(f"s_add_u32 s{S_KM0}, s{S_W1K}, {KRING + 0}")
    k(f"s_add_u32 s{S_VM0}, s{S_W1K}, {VRING + 3*16384}")
    k(f"s_mov_b32 s{S_CNT}, 0")
    k("s_mov_b32 s58, 16384")
    for qb in range(2):
        k(f"v_mov_b32 v{V_L[qb]}, 0")
        k(f"v_mov_b32 v{V_MREF[qb]}, 0xff7fffff")
        k(f"v_mov_b32 v{V_THR[qb]}, 0xff7fffff")
        k(f"v_mov_b32 v{V_MC[qb]}, 0")
    for i in range(128):
        k(f"v_accvgpr_write_b32 a{A_O+i}, 0")
    k("s_waitcnt vmcnt(8)")
    k("s_barrier")
    for kb in range(2):
        for ds in range(8):
            k(k_read(kb, ds).text)
        k("s_waitcnt lgkmcnt(0)")
        for ds in range(8):
            for qb in range(2):
                k(qk_mfma(0, kb, ds, qb)[0])
    k("s_nop 15")
    for kb in range(2):
        for it in max_items(0, kb):
            k(it.text)
    for r in V_KA:
        k(f"v_add_u32 v{r}, 16384, v{r}")
    def rescale():
        k("s_nop 15")
        k("s_nop 3")
        t = V_T
        for qb in range(2):
            k(f"v_mov_b32 v{t[0]}, v{V_TMAX[qb]}")
            k(f"v_mov_b32 v{t[1]}, v{V_TMAX[qb]}")
            k("s_nop 1")
            k(f"v_permlane32_swap_b32 v{t[0]}, v{t[1]}")
            k(f"v_max_f32 v{t[0]}, v{t[0]}, v{t[1]}")
            k(f"v_max_f32 v{t[0]}, v{t[0]}, v{V_MREF[qb]}")
            k(f"v_sub_f32 v{t[1]}, v{V_MREF[qb]}, v{t[0]}")
            k(f"v_mul_f32 v{t[1]}, s{S_C}, v{t[1]}")
            k(f"v_exp_f32 v{t[2+qb]}, v{t[1]}")
            k(f"v_mov_b32 v{V_MREF[qb]}, v{t[0]}")
            k(f"v_mul_f32 v{V_MC[qb]}, s{S_C}, v{t[0]}")
            k(f"v_add_f32 v{V_THR[qb]}, {f2u(TRAW):#x}, v{t[0]}")
            k(f"v_mul_f32 v{V_L[qb]}, v{V_L[qb]}, v{t[2+qb]}")
        for db in range(4):
            for qb in range(2):
                o = Oreg(db, qb)
                for i in range(0, 16, 4):
                    for j in range(4):
                        k(f"v_accvgpr_read_b32 v{t[4+j]}, a{o+i+j}")
                    for j in range(4):
                        k(f"v_mul_f32 v{t[4+j]}, v{t[4+j]}, v{t[2+qb]}")
                    for j in range(4):
                        k(f"v_accvgpr_write_b32 a{o+i+j}, v{t[4+j]}")
        k("s_nop 1")
    rescale()
    state = []
    mf, gaps = build_iter(0)
    pre = []
    for i in range(64):
        for g, it in gaps[i]:
            if g < 0:
                pre.append((g, it))
    pre.sort(key=lambda x: x[0])
    for g, it in pre:
        k(it.text)
        state.append(it.lds_def)
    init_state = list(state)
    loop = k.newlabel("loop")
    exitl = k.newlabel("exit")
    k.label(loop)
    for half in range(2):
        k(f"s_add_u32 s34, s{S_CNT}, 2")
        k("s_and_b32 s34, s34, 3")
        k("s_cmp_eq_u32 s34, 0")
        k(f"s_cselect_b32 s{S_DKA}, 0xffff4000, s58")
        k(f"s_add_u32 s34, s{S_CNT}, 0")
        k("s_and_b32 s34, s34, 3")
        k("s_cmp_eq_u32 s34, 0")
        k(f"s_cselect_b32 s{S_DVA}, 0xffff4000, s58")
        k("s_waitcnt vmcnt(8)")
        k("s_barrier")
        emit_iter(k, half, state, half == 0)
        scalar_step(k)
        k(f"s_add_u32 s{S_CNT}, s{S_CNT}, 1")
        k(f"s_cmp_ge_u32 s{S_CNT}, 32")
        k(f"s_cbranch_scc1 {exitl}")
        norescale = k.newlabel("nors")
        k(f"v_cmp_gt_f32 s[54:55], v{V_TMAX[0]}, v{V_THR[0]}")
        k(f"v_cmp_gt_f32 s[56:57], v{V_TMAX[1]}, v{V_THR[1]}")
        k("s_nop 3")
        k("s_or_b64 s[54:55], s[54:55], s[56:57]")
        k(f"s_cbranch_scc0 {norescale}")
        rescale()
        k.label(norescale)
        assert state == init_state, (state, init_state)
    k(f"s_branch {loop}")
    k.label(exitl)
    k("s_waitcnt lgkmcnt(0)")
    k("s_nop 15")
    k("s_nop 3")
    t = V_T
    for qb in range(2):
        k(f"v_mov_b32 v{t[0]}, v{V_L[qb]}")
        k(f"v_mov_b32 v{t[1]}, v{V_L[qb]}")
        k("s_nop 1")
        k(f"v_permlane32_swap_b32 v{t[0]}, v{t[1]}")
        k(f"v_add_f32 v{t[0]}, v{t[0]}, v{t[1]}")
        k(f"v_rcp_f32 v{t[2+qb]}, v{t[0]}")
    k("v_lshrrev_b32 v4, 5, v2")
    k("v_lshlrev_b32 v6, 3, v4")
    k("v_sub_u32 v5, v5, v6")
    for db in range(4):
        for qb in range(2):
            o = Oreg(db, qb)
            so = "0" if qb == 0 else "s36"
            for jj in range(4):
                for j in range(4):
                    k(f"v_accvgpr_read_b32 v{t[4+j]}, a{o+4*jj+j}")
                for j in range(4):
                    k(f"v_mul_f32 v{t[4+j]}, v{t[4+j]}, v{t[2+qb]}")
                d0 = t[8 + 2 * (jj & 1)]
                k(f"v_cvt_pk_bf16_f32 v{d0}, v{t[4]}, v{t[5]}")
                k(f"v_cvt_pk_bf16_f32 v{d0+1}, v{t[6]}, v{t[7]}")
                k(f"buffer_store_dwordx2 v[{d0}:{d0+1}], v5, s[{S_SRD_O}:{S_SRD_O+3}], {so} offen offset:{(db*32+8*jj)*2}")
    k.label(done)
    return k
```

```python
from asmlib import *
from k_small import rnd2


def emit_div(k, vdst, vsrc, d, tmp_s):
    if d & (d - 1) == 0:
        k(f"v_lshrrev_b32 v{vdst}, {d.bit_length()-1}, v{vsrc}")
    elif d == 12:
        k(f"s_mov_b32 s{tmp_s}, 43691")
        k(f"v_mul_lo_u32 v{vdst}, v{vsrc}, s{tmp_s}")
        k(f"v_lshrrev_b32 v{vdst}, 19, v{vdst}")
    else:
        raise ValueError(d)


def gemm_kernel(name, mode, M, N, K, BM, BNh, nB, BK, WM, WN, splitk, srcA, ldA, srcB, ldB, nst=3):
    TM = BM // WM // 32
    TN = BNh // WN // 32
    mt = M // BM
    nt = (N + BNh - 1) // BNh
    kchunk = K // splitk
    nsteps = kchunk // BK
    assert nsteps * BK == kchunk
    nwg = mt * nt * splitk
    rbA = BK * 2
    rbB = BNh * 2
    bytesA = BM * rbA
    bytesB = BK * rbB
    stage = bytesA + nB * bytesB
    assert stage % 1024 == 0 and bytesA % 4096 == 0 and bytesB % 4096 == 0, (bytesA, bytesB)
    k = Kern(name, nwg, 256, stage * nst)
    assert stage * nst <= 65536 or True
    done = k.newlabel("done")
    k(f"s_cmp_ge_u32 s2, {nwg}")
    k(f"s_cbranch_scc1 {done}")
    names = ["ws"] + [n for n in ([srcA] + list(srcB)) if n in ARG]
    if mode == "down":
        names += ["out"]
    p = load_ptrs(k, names, 4)
    if srcA in ARG:
        make_srd(k, 16, p[srcA], SIZE[srcA])
    else:
        ws_srd(k, 16, p["ws"], srcA)
    for i, b in enumerate(srcB):
        make_srd(k, 20 + 4 * i, p[b], SIZE[b])
    if mode == "q":
        ws_srd(k, 28, p["ws"], "q")
    elif mode == "part":
        ws_srd(k, 28, p["ws"], "part")
    elif mode == "glu":
        ws_srd(k, 28, p["ws"], "hh")
    elif mode == "down":
        make_srd(k, 28, p["out"], SIZE["out"])
        ws_srd(k, 32, p["ws"], "x1")
        ws_srd(k, 36, p["ws"], "mod")
    assert mt & (mt - 1) == 0
    k(f"s_and_b32 s40, s2, {mt-1}")
    k(f"s_lshr_b32 s43, s2, {mt.bit_length()-1}")
    if splitk == 1:
        k("s_mov_b32 s41, s43")
        k("s_mov_b32 s42, 0")
    else:
        assert nt & (nt - 1) == 0
        k(f"s_and_b32 s41, s43, {nt-1}")
        k(f"s_lshr_b32 s42, s43, {nt.bit_length()-1}")
    k("v_lshrrev_b32 v1, 6, v0")
    k("s_nop 0")
    k("v_readfirstlane_b32 s44, v1")
    k("v_and_b32 v2, 63, v0")
    k("s_lshl_b32 s45, s44, 10")
    npA = bytesA // 4096
    npB = bytesB // 4096
    vA = list(range(10, 10 + npA))
    vB = list(range(10 + npA, 10 + npA + npB))
    nxt = 10 + npA + npB
    cprA = rbA // 16
    k(f"s_mul_i32 s46, s40, {BM*ldA}")
    k(f"s_mul_i32 s47, s42, {kchunk*2}")
    k("s_add_u32 s46, s46, s47")
    for i in range(npA):
        k(f"v_add_u32 v3, {i*256}, v0")
        emit_div(k, 4, 3, cprA, 48)
        k(f"v_and_b32 v5, {cprA-1}, v3")
        if rbA == 128:
            k("v_lshrrev_b32 v6, 1, v4")
            k("v_and_b32 v6, 7, v6")
        elif rbA == 64:
            k("v_lshrrev_b32 v6, 2, v4")
            k("v_and_b32 v6, 3, v6")
        else:
            raise ValueError
        k("v_xor_b32 v5, v5, v6")
        k(f"s_mov_b32 s48, {ldA}")
        k("v_mul_lo_u32 v4, v4, s48")
        k("v_lshlrev_b32 v5, 4, v5")
        k(f"v_add3_u32 v{vA[i]}, v4, v5, s46")
    cprB = rbB // 16
    k(f"s_mul_i32 s46, s42, {kchunk*ldB}")
    k(f"s_mul_i32 s47, s41, {BNh*2}")
    k("s_add_u32 s46, s46, s47")
    for i in range(npB):
        k(f"v_add_u32 v3, {i*256}, v0")
        emit_div(k, 4, 3, cprB, 48)
        k(f"s_mov_b32 s48, {cprB}")
        k("v_mul_lo_u32 v5, v4, s48")
        k("v_sub_u32 v5, v3, v5")
        if rbB >= 256:
            assert rbB % 256 == 0
            k("v_and_b32 v6, 3, v4")
            k("v_lshlrev_b32 v6, 2, v6")
            k("v_xor_b32 v5, v5, v6")
        elif rbB == 128:
            k("v_lshrrev_b32 v6, 1, v4")
            k("v_and_b32 v6, 1, v6")
            k("v_lshlrev_b32 v6, 2, v6")
            k("v_xor_b32 v5, v5, v6")
        elif rbB == 192:
            pass
        else:
            raise ValueError
        k(f"s_mov_b32 s48, {ldB}")
        k("v_mul_lo_u32 v4, v4, s48")
        k("v_lshlrev_b32 v5, 4, v5")
        k(f"v_add3_u32 v{vB[i]}, v4, v5, s46")
    assert WM * WN == 4
    k(f"s_and_b32 s49, s44, {WM-1}")
    k(f"s_lshr_b32 s50, s44, {WM.bit_length()-1}")
    ns = BK // 16
    vRA = list(range(nxt, nxt + ns)); nxt += ns
    k("v_and_b32 v3, 31, v2")
    k("v_lshrrev_b32 v4, 5, v2")
    if rbA == 128:
        k("v_lshrrev_b32 v6, 1, v3")
        k("v_and_b32 v6, 7, v6")
    else:
        k("v_lshrrev_b32 v6, 2, v3")
        k("v_and_b32 v6, 3, v6")
    k(f"s_mul_i32 s48, s49, {TM*32*rbA}")
    k(f"v_mul_u32_u24 v7, {rbA}, v3")
    k("v_add_u32 v7, s48, v7")
    for s in range(ns):
        k(f"v_add_u32 v5, {2*s}, v4")
        k("v_xor_b32 v5, v5, v6")
        k(f"v_lshl_add_u32 v{vRA[s]}, v5, 4, v7")
    nvb = min(TN, 4) if rbB >= 256 else (min(TN, 2) if rbB == 128 else 1)
    vRB = list(range(nxt, nxt + nvb)); nxt += nvb
    k("v_lshrrev_b32 v3, 4, v2")
    k("v_and_b32 v3, 1, v3")
    k("v_lshrrev_b32 v4, 5, v2")
    k("v_lshrrev_b32 v5, 2, v2")
    k("v_and_b32 v5, 3, v5")
    k("v_and_b32 v6, 3, v2")
    k("v_lshlrev_b32 v7, 3, v4")
    k("v_add_u32 v7, v7, v5")
    k(f"v_mul_u32_u24 v7, {rbB}, v7")
    k("v_and_b32 v8, 1, v6")
    k("v_lshl_add_u32 v7, v8, 3, v7")
    k("v_lshrrev_b32 v6, 1, v6")
    k("v_lshl_add_u32 v6, v3, 1, v6")
    k(f"s_mul_i32 s48, s50, {TN*4}")
    k("v_add_u32 v6, s48, v6")
    for nb in range(nvb):
        k(f"v_add_u32 v8, {nb*4}, v6")
        if rbB >= 256:
            k("v_lshlrev_b32 v9, 2, v5")
            k("v_xor_b32 v8, v8, v9")
        elif rbB == 128:
            k("v_lshrrev_b32 v9, 1, v5")
            k("v_lshlrev_b32 v9, 2, v9")
            k("v_xor_b32 v8, v8, v9")
        k(f"v_lshl_add_u32 v{vRB[nb]}, v8, 4, v7")
    nbank = (stage * nst + 65535) // 65536
    bankRA = [vRA]
    bankRB = [vRB]
    for b in range(1, nbank):
        ra = list(range(nxt, nxt + ns)); nxt += ns
        rb = list(range(nxt, nxt + nvb)); nxt += nvb
        for d, sr in zip(ra + rb, vRA + vRB):
            k(f"v_add_u32 v{d}, {b*65536}, v{sr}")
        bankRA.append(ra)
        bankRB.append(rb)
    nxt = (nxt + 3) // 4 * 4
    nfr = (TM + nB * TN)
    fr = [[nxt + (b * nfr + i) * 4 for i in range(nfr)] for b in range(2)]
    nxt += 2 * nfr * 4
    nxt = (nxt + 15) // 16 * 16
    acc = {}
    for bi in range(nB):
        for tn in range(TN):
            for tm in range(TM):
                acc[(bi, tn, tm)] = nxt
                nxt += 16
    k.nvgpr = nxt + 16
    assert k.nvgpr <= 256, k.nvgpr
    tmpv = nxt
    for a in acc.values():
        for i in range(16):
            k(f"v_mov_b32 v{a+i}, 0")

    def issue_loads(step):
        st = step % nst
        base = st * stage
        k(f"s_mov_b32 s51, {step*BK*2}")
        k(f"s_mov_b32 s52, {step*BK*ldB}")
        for i in range(npA):
            k(f"s_add_u32 m0, s45, {base + i*4096}")
            k("s_nop 0")
            k(f"buffer_load_dwordx4 v{vA[i]}, s[16:19], s51 offen lds")
        for bi in range(nB):
            for i in range(npB):
                k(f"s_add_u32 m0, s45, {base + bytesA + bi*bytesB + i*4096}")
                k("s_nop 0")
                k(f"buffer_load_dwordx4 v{vB[i]}, s[{20+4*bi}:{23+4*bi}], s52 offen lds")
    npl = npA + nB * npB

    def issue_reads(step, s, buf):
        st = step % nst
        base = st * stage
        n = 0
        for tm in range(TM):
            r = fr[buf][tm]
            off = base + tm * 32 * rbA
            k(f"ds_read_b128 v[{r}:{r+3}], v{bankRA[off>>16][s]} offset:{off & 65535}")
            n += 1
        for bi in range(nB):
            for tn in range(TN):
                r = fr[buf][TM + bi * TN + tn]
                extra = (tn // nvb) * nvb * 64
                off = base + bytesA + bi * bytesB + 16 * s * rbB + extra
                k(f"ds_read_b64_tr_b16 v[{r}:{r+1}], v{bankRB[off>>16][tn % nvb]} offset:{off & 65535}")
                off += 4 * rbB
                k(f"ds_read_b64_tr_b16 v[{r+2}:{r+3}], v{bankRB[off>>16][tn % nvb]} offset:{off & 65535}")
                n += 2
        return n

    pd = nst - 1
    for st0 in range(min(pd, nsteps)):
        issue_loads(st0)
    for step in range(nsteps):
        inflight = min(pd - 1, nsteps - 1 - step)
        k(f"s_waitcnt vmcnt({npl * inflight})")
        k("s_barrier")
        if step + pd < nsteps:
            issue_loads(step + pd)
        issue_reads(step, 0, 0)
        for s in range(ns):
            buf = s & 1
            if s + 1 < ns:
                n = issue_reads(step, s + 1, buf ^ 1)
                k(f"s_waitcnt lgkmcnt({n})")
            else:
                k("s_waitcnt lgkmcnt(0)")
            for bi in range(nB):
                for tn in range(TN):
                    for tm in range(TM):
                        a = acc[(bi, tn, tm)]
                        wa = fr[buf][TM + bi * TN + tn]
                        xb = fr[buf][tm]
                        k(f"v_mfma_f32_32x32x16_bf16 v[{a}:{a+15}], v[{wa}:{wa+3}], v[{xb}:{xb+3}], v[{a}:{a+15}]")
    k("s_nop 15")
    k("s_nop 3")
    k("v_and_b32 v3, 31, v2")
    k("v_lshrrev_b32 v4, 5, v2")
    k(f"s_mul_i32 s46, s40, {BM}")
    k(f"s_mul_i32 s47, s49, {TM*32}")
    k("s_add_u32 s46, s46, s47")
    k("v_add_u32 v3, s46, v3")
    k(f"s_mul_i32 s46, s41, {BNh}")
    k(f"s_mul_i32 s47, s50, {TN*32}")
    k("s_add_u32 s46, s46, s47")
    k("v_lshl_add_u32 v4, v4, 2, s46")
    t0 = tmpv
    if mode == "q":
        ldc = N * 2
        k(f"s_mov_b32 s48, {ldc}")
        k("v_mul_lo_u32 v5, v3, s48")
        k("v_lshl_add_u32 v5, v4, 1, v5")
        for tn in range(TN):
            for tm in range(TM):
                a = acc[(0, tn, tm)]
                k(f"s_mov_b32 s48, {tm*32*ldc}")
                for jj in range(4):
                    k(f"v_cvt_pk_bf16_f32 v{t0}, v{a+4*jj}, v{a+4*jj+1}")
                    k(f"v_cvt_pk_bf16_f32 v{t0+1}, v{a+4*jj+2}, v{a+4*jj+3}")
                    k(f"buffer_store_dwordx2 v[{t0}:{t0+1}], v5, s[28:31], s48 offen offset:{(tn*32+8*jj)*2}")
                    k("s_nop 0")
                    t0 = tmpv + ((t0 - tmpv + 2) % 8)
    elif mode == "part":
        ldc = N * 4
        k(f"s_mov_b32 s48, {ldc}")
        k("v_mul_lo_u32 v5, v3, s48")
        k("v_lshl_add_u32 v5, v4, 2, v5")
        k(f"s_mul_i32 s47, s42, {M*N*4}")
        for tn in range(TN):
            for tm in range(TM):
                a = acc[(0, tn, tm)]
                k(f"s_add_u32 s48, s47, {tm*32*ldc}")
                for jj in range(4):
                    k(f"buffer_store_dwordx4 v[{a+4*jj}:{a+4*jj+3}], v5, s[28:31], s48 offen offset:{(tn*32+8*jj)*4}")
    elif mode == "glu":
        ldc = N * 2
        k(f"v_mov_b32 v{tmpv+12}, 0x3d372713")
        k(f"s_mov_b32 s48, {ldc}")
        k("v_mul_lo_u32 v5, v3, s48")
        k("v_lshl_add_u32 v5, v4, 1, v5")
        for tn in range(TN):
            skip = k.newlabel("skip")
            k(f"s_add_u32 s47, s46, {tn*32}")
            k(f"s_cmp_ge_u32 s47, {N}")
            k(f"s_cbranch_scc1 {skip}")
            for tm in range(TM):
                g = acc[(0, tn, tm)]
                u = acc[(1, tn, tm)]
                k(f"s_mov_b32 s48, {tm*32*ldc}")
                for jj in range(4):
                    for pr in range(2):
                        g0, g1 = g + 4 * jj + 2 * pr, g + 4 * jj + 2 * pr + 1
                        u0, u1 = u + 4 * jj + 2 * pr, u + 4 * jj + 2 * pr + 1
                        rnd2(k, g0, g1, tmpv + 8)
                        rnd2(k, u0, u1, tmpv + 8)
                        for (gg, t) in ((g0, tmpv + 9), (g1, tmpv + 10)):
                            k(f"v_mul_f32 v{t}, v{gg}, v{gg}")
                            k(f"v_fma_f32 v{t}, v{t}, v{tmpv+12}, 1.0")
                            k(f"v_mul_f32 v{t}, v{t}, v{gg}")
                            k(f"v_mul_f32 v{t}, 0xc0135761, v{t}")
                            k(f"v_exp_f32 v{t}, v{t}")
                        k("s_nop 0")
                        for (gg, t) in ((g0, tmpv + 9), (g1, tmpv + 10)):
                            k(f"v_add_f32 v{t}, 1.0, v{t}")
                            k(f"v_rcp_f32 v{t}, v{t}")
                        k("s_nop 0")
                        for (gg, t) in ((g0, tmpv + 9), (g1, tmpv + 10)):
                            k(f"v_mul_f32 v{gg}, v{gg}, v{t}")
                        rnd2(k, g0, g1, tmpv + 8)
                        k(f"v_mul_f32 v{g0}, v{g0}, v{u0}")
                        k(f"v_mul_f32 v{g1}, v{g1}, v{u1}")
                        k(f"v_cvt_pk_bf16_f32 v{t0+pr}, v{g0}, v{g1}")
                    k(f"buffer_store_dwordx2 v[{t0}:{t0+1}], v5, s[28:31], s48 offen offset:{(tn*32+8*jj)*2}")
                    k("s_nop 0")
                    t0 = tmpv + ((t0 - tmpv + 2) % 8)
            k.label(skip)
    elif mode == "down":
        ldc = N * 2
        k(f"s_mov_b32 s48, {ldc}")
        k("v_mul_lo_u32 v5, v3, s48")
        k("v_lshl_add_u32 v5, v4, 1, v5")
        k("v_lshlrev_b32 v6, 2, v4")
        k(f"s_mov_b32 s47, {5*512*4}")
        for tn in range(TN):
            for tm in range(TM):
                a = acc[(0, tn, tm)]
                k(f"s_mov_b32 s48, {tm*32*ldc}")
                for jj in range(4):
                    k(f"buffer_load_dwordx2 v[{tmpv}:{tmpv+1}], v5, s[32:35], s48 offen offset:{(tn*32+8*jj)*2}")
                    k(f"buffer_load_dwordx4 v[{tmpv+4}:{tmpv+7}], v6, s[36:39], s47 offen offset:{(tn*32+8*jj)*4}")
                    r = [a + 4 * jj + i for i in range(4)]
                    rnd2(k, r[0], r[1], tmpv + 8)
                    rnd2(k, r[2], r[3], tmpv + 8)
                    k("s_waitcnt vmcnt(0)")
                    for i in range(4):
                        k(f"v_mul_f32 v{r[i]}, v{r[i]}, v{tmpv+4+i}")
                    rnd2(k, r[0], r[1], tmpv + 8)
                    rnd2(k, r[2], r[3], tmpv + 8)
                    k(f"v_lshlrev_b32 v{tmpv+4}, 16, v{tmpv}")
                    k(f"v_and_b32 v{tmpv+5}, 0xffff0000, v{tmpv}")
                    k(f"v_lshlrev_b32 v{tmpv+6}, 16, v{tmpv+1}")
                    k(f"v_and_b32 v{tmpv+7}, 0xffff0000, v{tmpv+1}")
                    for i in range(4):
                        k(f"v_add_f32 v{r[i]}, v{r[i]}, v{tmpv+4+i}")
                    k(f"v_cvt_pk_bf16_f32 v{tmpv+2}, v{r[0]}, v{r[1]}")
                    k(f"v_cvt_pk_bf16_f32 v{tmpv+3}, v{r[2]}, v{r[3]}")
                    k(f"buffer_store_dwordx2 v[{tmpv+2}:{tmpv+3}], v5, s[28:31], s48 offen offset:{(tn*32+8*jj)*2}")
                    k("s_nop 1")
    k.label(done)
    k.nsgpr = 64
    return k, tmpv
```

```python
from asmlib import *


def rnd2(k, a, b, tmp):
    k(f"v_cvt_pk_bf16_f32 v{tmp}, v{a}, v{b}")
    k(f"v_lshlrev_b32 v{a}, 16, v{tmp}")
    k(f"v_and_b32 v{b}, 0xffff0000, v{tmp}")


def wave_allreduce_add(k, v, vlane4, tmpa, tmpd, masks=(1, 2, 4, 8, 16, 32)):
    for m in masks:
        k(f"v_xor_b32 v{tmpa}, {m*4}, v{vlane4}")
        k(f"ds_bpermute_b32 v{tmpd}, v{tmpa}, v{v}")
        k("s_waitcnt lgkmcnt(0)")
        k(f"v_add_f32 v{v}, v{v}, v{tmpd}")


def mod_kernel():
    k = Kern("mod_kernel", 96, 256, 1024)
    k.nvgpr = 112
    k.nsgpr = 40
    done = k.newlabel("done")
    k("s_cmp_ge_u32 s2, 96")
    k(f"s_cbranch_scc1 {done}")
    p = load_ptrs(k, ["c", "wmod", "ws"], 4)
    make_srd(k, 12, p["c"], SIZE["c"])
    make_srd(k, 16, p["wmod"], SIZE["wmod"])
    ws_srd(k, 20, p["ws"], "mod")
    k("v_and_b32 v1, 15, v0")
    k("v_lshrrev_b32 v2, 4, v0")
    k("v_lshlrev_b32 v3, 6, v2")
    for j in range(4):
        k(f"buffer_load_dwordx4 v[{10+4*j}:{13+4*j}], v3, s[12:15], 0 offen offset:{16*j}")
    k("s_mov_b32 s24, 196608")
    k("v_mul_lo_u32 v4, v2, s24")
    k("s_lshl_b32 s25, s2, 6")
    k("v_lshlrev_b32 v5, 2, v1")
    k("v_add3_u32 v4, v4, v5, s25")
    for i in range(32):
        k(f"s_mov_b32 s26, {i*6144}")
        k(f"buffer_load_dword v{64+i}, v4, s[16:19], s26 offen")
    k("s_waitcnt vmcnt(32)")
    for j in range(16):
        a, b = 30 + 2 * j, 31 + 2 * j
        k(f"v_lshlrev_b32 v{a}, 16, v{10+j}")
        k(f"v_and_b32 v{b}, 0xffff0000, v{10+j}")
        k(f"v_mul_f32 v6, 0xbfb8aa3b, v{a}")
        k(f"v_mul_f32 v7, 0xbfb8aa3b, v{b}")
        k("v_exp_f32 v6, v6")
        k("v_exp_f32 v7, v7")
        k("s_nop 0")
        k("v_add_f32 v6, 1.0, v6")
        k("v_add_f32 v7, 1.0, v7")
        k("v_rcp_f32 v6, v6")
        k("v_rcp_f32 v7, v7")
        k("s_nop 0")
        k(f"v_mul_f32 v{a}, v{a}, v6")
        k(f"v_mul_f32 v{b}, v{b}, v7")
        rnd2(k, a, b, 6)
    k("v_mov_b32 v8, 0")
    k("v_mov_b32 v9, 0")
    for i in range(32):
        k(f"s_waitcnt vmcnt({31-i})")
        k(f"v_lshlrev_b32 v6, 16, v{64+i}")
        k(f"v_and_b32 v7, 0xffff0000, v{64+i}")
        k(f"v_fmac_f32 v8, v{30+i}, v6")
        k(f"v_fmac_f32 v9, v{30+i}, v7")
    k("v_and_b32 v26, 63, v0")
    k("v_lshlrev_b32 v26, 2, v26")
    wave_allreduce_add(k, 8, 26, 27, 28, masks=(16, 32))
    wave_allreduce_add(k, 9, 26, 27, 28, masks=(16, 32))
    k("v_lshrrev_b32 v27, 6, v0")
    k("v_lshlrev_b32 v27, 4, v27")
    k("v_add_u32 v27, v27, v1")
    k("v_lshlrev_b32 v27, 3, v27")
    k("ds_write_b64 v27, v[8:9]")
    k("s_waitcnt lgkmcnt(0)")
    k("s_barrier")
    k("v_lshlrev_b32 v27, 3, v1")
    k("ds_read_b64 v[10:11], v27")
    k("ds_read_b64 v[12:13], v27 offset:128")
    k("ds_read_b64 v[14:15], v27 offset:256")
    k("ds_read_b64 v[16:17], v27 offset:384")
    k("s_waitcnt lgkmcnt(0)")
    k("v_add_f32 v10, v10, v12")
    k("v_add_f32 v11, v11, v13")
    k("v_add_f32 v14, v14, v16")
    k("v_add_f32 v15, v15, v17")
    k("v_add_f32 v10, v10, v14")
    k("v_add_f32 v11, v11, v15")
    rnd2(k, 10, 11, 6)
    k("s_lshl_b32 s25, s2, 7")
    k("v_lshlrev_b32 v27, 3, v1")
    k("v_add_u32 v27, s25, v27")
    k("v_cmp_gt_u32 vcc, 16, v0")
    k("s_and_saveexec_b64 s[28:29], vcc")
    k(f"s_cbranch_execz {done}")
    k("buffer_store_dwordx2 v[10:11], v27, s[20:23], 0 offen")
    k.label(done)
    return k


def ln_kernel(mode, nparts=4):
    name = "ln1_kernel" if mode == 1 else "ln2_kernel"
    k = Kern(name, 512, 256, 0)
    k.nvgpr = 96
    k.nsgpr = 48
    done = k.newlabel("done")
    k("s_cmp_ge_u32 s2, 512")
    k(f"s_cbranch_scc1 {done}")
    p = load_ptrs(k, ["x", "ws"], 4)
    make_srd(k, 12, p["x"], SIZE["x"])
    ws_srd(k, 16, p["ws"], "mod")
    ws_srd(k, 20, p["ws"], "h" if mode == 1 else "h2")
    if mode == 2:
        ws_srd(k, 24, p["ws"], "part")
        ws_srd(k, 28, p["ws"], "x1")
    k("v_and_b32 v1, 63, v0")
    k("v_lshrrev_b32 v2, 6, v0")
    k("s_lshl_b32 s32, s2, 2")
    k("v_add_u32 v2, s32, v2")
    k("v_lshlrev_b32 v3, 10, v2")
    k("v_lshlrev_b32 v4, 4, v1")
    k("v_add_u32 v3, v3, v4")
    k("v_lshlrev_b32 v5, 5, v1")
    k("buffer_load_dwordx4 v[10:13], v3, s[12:15], 0 offen")
    sh_off, sc_off = (0, 512 * 4) if mode == 1 else (3 * 512 * 4, 4 * 512 * 4)
    k(f"s_mov_b32 s33, {sh_off}")
    k(f"s_mov_b32 s34, {sc_off}")
    k("buffer_load_dwordx4 v[40:43], v5, s[16:19], s33 offen")
    k("buffer_load_dwordx4 v[44:47], v5, s[16:19], s33 offen offset:16")
    k("buffer_load_dwordx4 v[48:51], v5, s[16:19], s34 offen")
    k("buffer_load_dwordx4 v[52:55], v5, s[16:19], s34 offen offset:16")
    if mode == 2:
        k(f"s_mov_b32 s35, {2*512*4}")
        k("buffer_load_dwordx4 v[56:59], v5, s[16:19], s35 offen")
        k("buffer_load_dwordx4 v[60:63], v5, s[16:19], s35 offen offset:16")
        k("v_lshlrev_b32 v6, 1, v3")
        for pp in range(nparts):
            k(f"s_mov_b32 s36, {pp*2048*512*4}")
            k(f"buffer_load_dwordx4 v[{64+8*pp}:{67+8*pp}], v6, s[24:27], s36 offen")
            k(f"buffer_load_dwordx4 v[{68+8*pp}:{71+8*pp}], v6, s[24:27], s36 offen offset:16")
    k("s_waitcnt vmcnt(0)")
    for j in range(4):
        k(f"v_lshlrev_b32 v{20+2*j}, 16, v{10+j}")
        k(f"v_and_b32 v{21+2*j}, 0xffff0000, v{10+j}")
    if mode == 2:
        for i in range(8):
            for pp in range(1, nparts):
                k(f"v_add_f32 v{64+i}, v{64+i}, v{64+8*pp+i}")
        for j in range(4):
            rnd2(k, 64 + 2 * j, 65 + 2 * j, 7)
        for i in range(8):
            k(f"v_mul_f32 v{64+i}, v{64+i}, v{56+i}")
        for j in range(4):
            rnd2(k, 64 + 2 * j, 65 + 2 * j, 7)
        for i in range(8):
            k(f"v_add_f32 v{20+i}, v{20+i}, v{64+i}")
        for j in range(4):
            k(f"v_cvt_pk_bf16_f32 v{10+j}, v{20+2*j}, v{21+2*j}")
        for j in range(4):
            k(f"v_lshlrev_b32 v{20+2*j}, 16, v{10+j}")
            k(f"v_and_b32 v{21+2*j}, 0xffff0000, v{10+j}")
        k("buffer_store_dwordx4 v[10:13], v3, s[28:31], 0 offen")
    k("v_lshlrev_b32 v8, 2, v1")
    k("v_add_f32 v30, v20, v21")
    for i in range(2, 8):
        k(f"v_add_f32 v30, v30, v{20+i}")
    wave_allreduce_add(k, 30, 8, 6, 7)
    k("v_mul_f32 v30, 0x3b000000, v30")
    k("v_mov_b32 v31, 0")
    for i in range(8):
        k(f"v_sub_f32 v32, v{20+i}, v30")
        k("v_fmac_f32 v31, v32, v32")
    wave_allreduce_add(k, 31, 8, 6, 7)
    k("v_mul_f32 v31, 0x3b000000, v31")
    rnd2(k, 30, 31, 7)
    k("v_add_f32 v31, 0x3727c5ac, v31")
    k("v_mov_b32 v32, 0")
    rnd2(k, 31, 32, 7)
    k("v_sqrt_f32 v31, v31")
    k("s_nop 0")
    rnd2(k, 31, 32, 7)
    k("v_rcp_f32 v31, v31")
    k("s_nop 0")
    for i in range(8):
        k(f"v_sub_f32 v{20+i}, v{20+i}, v30")
    for j in range(4):
        rnd2(k, 20 + 2 * j, 21 + 2 * j, 7)
    for i in range(8):
        k(f"v_mul_f32 v{20+i}, v{20+i}, v31")
    for j in range(4):
        rnd2(k, 20 + 2 * j, 21 + 2 * j, 7)
    for i in range(8):
        k(f"v_add_f32 v{48+i}, 1.0, v{48+i}")
    for j in range(4):
        rnd2(k, 48 + 2 * j, 49 + 2 * j, 7)
    for i in range(8):
        k(f"v_mul_f32 v{20+i}, v{20+i}, v{48+i}")
    for j in range(4):
        rnd2(k, 20 + 2 * j, 21 + 2 * j, 7)
    for i in range(8):
        k(f"v_add_f32 v{20+i}, v{20+i}, v{40+i}")
    for j in range(4):
        k(f"v_cvt_pk_bf16_f32 v{10+j}, v{20+2*j}, v{21+2*j}")
    k("buffer_store_dwordx4 v[10:13], v3, s[20:23], 0 offen")
    k.label(done)
    return k
```

```python
import sys
from asmlib import *
from k_small import mod_kernel, ln_kernel
from k_gemm import gemm_kernel
from k_attn import attn_kernel

REF = open('adaLN_cond__gqa_block_cached__glu_gated_geglu__prompt.s.ref').read()
hdr = "\n".join(l for l in REF.split("\n") if l.startswith(";") and "@launch" not in l and "Override" not in l and "grid=ceil" not in l)

def build(upto=99):
    ks = [mod_kernel(), ln_kernel(1),
          gemm_kernel("qproj_kernel", "q", 2048, 4096, 512, 128, 128, 1, 64, 2, 2, 1, "h", 1024, ["wq"], 8192, nst=2)[0],
          attn_kernel(),
          gemm_kernel("oproj_kernel", "part", 2048, 512, 4096, 128, 128, 1, 64, 2, 2, 4, "o", 8192, ["wo"], 1024, nst=2)[0],
          ln_kernel(2, 4),
          gemm_kernel("glu_kernel", "glu", 2048, 1376, 512, 128, 96, 2, 64, 4, 1, 1, "h2", 1024, ["wg", "wu"], 2752, nst=2)[0],
          gemm_kernel("down_kernel", "down", 2048, 512, 1376, 64, 64, 1, 32, 2, 2, 1, "hh", 2752, ["wd"], 1024, nst=3)[0],
          ]
    return assemble(ks[:upto], hdr)

if __name__ == "__main__":
    upto = int(sys.argv[1]) if len(sys.argv) > 1 else 99
    out = sys.argv[2] if len(sys.argv) > 2 else 'adaLN_cond__gqa_block_cached__glu_gated_geglu__prompt.s'
    open(out, 'w').write(build(upto))
```
